```python
import torch

def _softmax(x, axis=-1):
    return torch.softmax(x, dim=axis)
def _gelu(x):
    return torch.nn.functional.gelu(x, approximate="tanh")
def _silu(x):
    return torch.nn.functional.silu(x)
def _sigmoid(x):
    return torch.sigmoid(x)
def _layernorm(x, axis=-1, eps=1e-5):
    m = x.mean(dim=axis, keepdim=True)
    v = x.var(dim=axis, keepdim=True, unbiased=False)
    return (x - m) / torch.sqrt(v + eps)
def _scatter_add(tgt, idx, src, axis=0):
    return tgt.clone().index_add_(axis, idx, src)
def _segment_sum(src, seg, n):
    out = torch.zeros((n,) + src.shape[1:], dtype=src.dtype)
    return out.index_add_(0, seg, src)
def _pad(x, pw):
    flat = tuple(v for pair in reversed(pw) for v in pair)
    return torch.nn.functional.pad(x, flat)

kernel_name = 'parallel_sum__ssm_conv_s5__dense_activation_silu__prompt'

def setup_inputs():

    _w = (lambda a: (lambda t: t.to(torch.bfloat16) if t.is_floating_point() else t)(torch.as_tensor(a)))
    def _A_setup():
        B, S, D = 1, 2048, 512
        P = D
        Lambda_re = -0.5 * (lambda _x: torch.exp(torch.as_tensor(_x)))((lambda *s: torch.randn(*s, dtype=torch.bfloat16) * 0.2)(P))
        Lambda_im = (lambda *s: torch.randn(*s, dtype=torch.bfloat16) * 0.8)(P) * 1.0
        B_re = (lambda *s: torch.randn(*s, dtype=torch.bfloat16) * 0.2)(P, D) * (D ** -0.5)
        B_im = (lambda *s: torch.randn(*s, dtype=torch.bfloat16) * 0.2)(P, D) * (D ** -0.5)
        C_re = (lambda *s: torch.randn(*s, dtype=torch.bfloat16) * 0.2)(D, P) * (P ** -0.5)
        C_im = (lambda *s: torch.randn(*s, dtype=torch.bfloat16) * 0.2)(D, P) * (P ** -0.5)
        log_dt = (lambda *s: torch.randn(*s, dtype=torch.bfloat16) * 0.2)(P) * 0.3 - 2.0
        Dskip = (lambda *s: torch.randn(*s, dtype=torch.bfloat16) * 0.05)(D)
        return {
            "x": _w((lambda *s: torch.randn(*s, dtype=torch.bfloat16) * 0.05)(B, S, D)),
            "Lambda_re": _w(Lambda_re),
            "Lambda_im": _w(Lambda_im),
            "B_re": _w(B_re),
            "B_im": _w(B_im),
            "C_re": _w(C_re),
            "C_im": _w(C_im),
            "log_dt": _w(log_dt),
            "Dskip": _w(Dskip),
        }
    _A_in = _A_setup()

    def _B_setup():
        B, S, D, F = 1, 2048, 512, 1792
        return {
            "x": _w((lambda *s: torch.randn(*s, dtype=torch.bfloat16) * 0.05)(B, S, D)),
            "w1": _w((lambda *s: torch.randn(*s, dtype=torch.bfloat16) * 0.8)(D, F) * (D ** -0.5)),
            "w2": _w((lambda *s: torch.randn(*s, dtype=torch.bfloat16) * 0.2)(F, D) * (F ** -0.5)),
        }
    _B_in = _B_setup()

    return {
        "A_x": _A_in["x"],
        "A_Lambda_re": _A_in["Lambda_re"],
        "A_Lambda_im": _A_in["Lambda_im"],
        "A_B_re": _A_in["B_re"],
        "A_B_im": _A_in["B_im"],
        "A_C_re": _A_in["C_re"],
        "A_C_im": _A_in["C_im"],
        "A_log_dt": _A_in["log_dt"],
        "A_Dskip": _A_in["Dskip"],
        "B_x": _B_in["x"],
        "B_w1": _B_in["w1"],
        "B_w2": _B_in["w2"],
    }

def reference(A_x, A_Lambda_re, A_Lambda_im, A_B_re, A_B_im, A_C_re, A_C_im, A_log_dt, A_Dskip, B_x, B_w1, B_w2):
    def _A_ref(x, Lambda_re, Lambda_im, B_re, B_im, C_re, C_im, log_dt, Dskip):
        Bsz, L, H = x.shape
        Lam = Lambda_re + 1j * Lambda_im
        Bmat = B_re + 1j * B_im
        Cmat = C_re + 1j * C_im
        dt = torch.exp(log_dt)
        Lam_bar = torch.exp(dt * Lam)
        B_bar = ((Lam_bar - 1.0) / Lam)[:, None] * Bmat
        Bu = torch.einsum("bld,pd->blp", x + 0j, B_bar)
        h = torch.zeros_like(Bu[:, 0, :])
        hs = []
        for t in range(L):
            h = Lam_bar[None, :] * h + Bu[:, t, :]
            hs.append(h)
        hseq = torch.stack(hs, 1)
        y = 2.0 * torch.einsum("blp,dp->bld", hseq, Cmat).real + x * Dskip[None, None, :]
        return y

    def _B_ref(x, w1, w2):
        h = torch.einsum("bsd,df->bsf", x, w1)
        h = _silu(h)
        out = torch.einsum("bsf,fd->bsd", h, w2)
        return out

    x = A_x
    xn = _layernorm(x, axis=-1)
    return x + _A_ref(xn, A_Lambda_re, A_Lambda_im, A_B_re, A_B_im, A_C_re, A_C_im, A_log_dt, A_Dskip) + _B_ref(xn, B_w1, B_w2)
```

```python
import sys
NAME = "parallel_sum__ssm_conv_s5__dense_activation_silu__prompt"
HEAD = open("cdna_kernels/%s.s.ref" % NAME).read().split("; Override launch")[0]
def kd(name, vgpr=128, acc=None):
    acc = acc or vgpr
    return """.amdhsa_kernel %s
  .amdhsa_next_free_vgpr %d
  .amdhsa_next_free_sgpr 102
  .amdhsa_accum_offset %d
  .amdhsa_group_segment_fixed_size 0
  .amdhsa_kernarg_size 120
  .amdhsa_user_sgpr_count 2
  .amdhsa_user_sgpr_kernarg_segment_ptr 1
  .amdhsa_system_sgpr_workgroup_id_x 1
.end_amdhsa_kernel
""" % (name, vgpr, acc)
XN, W1T, W2T, U, H = 0, 4<<20, 8<<20, 16<<20, 32<<20
def srd(L, s, koff, size):
    L.append("s_load_dwordx2 s[%d:%d], s[0:1], %d\ns_waitcnt lgkmcnt(0)\ns_mov_b32 s%d, 0x%x\ns_mov_b32 s%d, 0x20000" % (s, s+1, koff, s+2, size, s+3))
def start(L, name, nwg):
    L.append(".globl %s\n.p2align 8\n.type %s,@function\n%s:" % (name, name, name))
    L.append("s_cmp_ge_u32 s2, %d\ns_cbranch_scc1 L_end_%s" % (nwg, name))
def end(L, name):
    L.append("L_end_%s:\ns_endpgm" % name)
def red64(L, v, t):
    for off in (0x041F, 0x081F, 0x101F, 0x201F, 0x401F):
        L.append("ds_swizzle_b32 v%d, v%d offset:0x%x\ns_waitcnt lgkmcnt(0)\nv_add_f32 v%d, v%d, v%d" % (t, v, off, v, v, t))
    L.append("s_nop 1\nv_readlane_b32 s40, v%d, 0\nv_readlane_b32 s41, v%d, 32\ns_nop 1\nv_mov_b32 v%d, s40\nv_add_f32 v%d, s41, v%d" % (v, v, v, v, v))
def rbf(L, v):
    L.append("v_cvt_pk_bf16_f32 v%d, v%d, v%d\nv_lshlrev_b32 v%d, 16, v%d" % (v, v, v, v, v))
def gen(mimic=True, perturb=None, extra_kernels=0):
    L = []
    ks = [("ln_kernel", 2048, 64), ("tr_kernel", 7168, 256), ("g1_kernel", 64*88, 64), ("scan_kernel", 8, 64), ("g2_kernel", 64*16, 64)]
    for i in range(extra_kernels): ks.append(("nop_kernel", 256, 256))
    L.append(HEAD.rstrip())
    for n, g, b in ks: L.append("; @launch kernel=%s grid=(%d,1,1) block=(%d,1,1) lds=0" % (n, g, b))
    L.append('.amdgcn_target "amdgcn-amd-amdhsa--gfx950"\n.text')
    A = L.append
    start(L, "ln_kernel", 2048)
    srd(L, 8, 0, 2048*1024); srd(L, 12, 112, 256<<20)
    A("s_lshl_b32 s3, s2, 10\nv_lshlrev_b32 v1, 4, v0\nbuffer_load_dwordx4 v[4:7], v1, s[8:11], s3 offen\ns_waitcnt vmcnt(0)")
    for i in range(4):
        A("v_lshlrev_b32 v%d, 16, v%d\nv_and_b32 v%d, 0xffff0000, v%d" % (8+2*i, 4+i, 9+2*i, 4+i))
    A("v_mov_b32 v16, v8")
    for i in range(9, 16): A("v_add_f32 v16, v16, v%d" % i)
    red64(L, 16, 17)
    A("v_mul_f32 v16, 0x3b000000, v16")
    A("v_mov_b32 v18, 0")
    for i in range(8, 16): A("v_sub_f32 v19, v%d, v16\nv_fmac_f32 v18, v19, v19" % i)
    red64(L, 18, 17)
    A("v_mul_f32 v18, 0x3b000000, v18")
    if mimic:
        rbf(L, 16); rbf(L, 18)
    A("v_add_f32 v18, 0x3727c5ac, v18")
    if mimic: rbf(L, 18)
    A("v_sqrt_f32 v18, v18\ns_nop 0")
    if mimic: rbf(L, 18)
    A("v_rcp_f32 v18, v18\ns_nop 0")
    for i in range(8, 16):
        A("v_sub_f32 v%d, v%d, v16" % (i, i))
        if mimic: rbf(L, i)
        A("v_mul_f32 v%d, v%d, v18" % (i, i))
    for i in range(4): A("v_cvt_pk_bf16_f32 v%d, v%d, v%d" % (4+i, 8+2*i, 9+2*i))
    A("s_add_u32 s3, s3, %d\nbuffer_store_dwordx4 v[4:7], v1, s[12:15], s3 offen" % XN)
    end(L, "ln_kernel")
    start(L, "tr_kernel", 7168)
    srd(L, 8, 80, 512*1792*2); srd(L, 16, 88, 512*1792*2); srd(L, 12, 112, 256<<20)
    A("s_cmp_ge_u32 s2, 3584\ns_cbranch_scc1 L_tr2")
    A("s_lshl_b32 s3, s2, 8\nv_add_u32 v1, s3, v0\nv_lshrrev_b32 v2, 9, v1\nv_and_b32 v3, 511, v1\nv_mul_u32_u24 v3, 1792, v3\nv_add_lshl_u32 v3, v3, v2, 1\nv_lshlrev_b32 v1, 1, v1")
    A("buffer_load_ushort v4, v3, s[8:11], 0 offen\ns_mov_b32 s4, %d\ns_waitcnt vmcnt(0)\nbuffer_store_short v4, v1, s[12:15], s4 offen\ns_endpgm" % W1T)
    A("L_tr2:")
    A("s_sub_u32 s3, s2, 3584\ns_lshl_b32 s3, s3, 8\nv_add_u32 v1, s3, v0\nv_lshrrev_b32 v2, 9, v1\nv_and_b32 v3, 511, v1\nv_mul_u32_u24 v3, 1792, v3\nv_add_lshl_u32 v3, v3, v2, 1\nv_lshlrev_b32 v1, 1, v1")
    A("buffer_load_ushort v4, v1, s[16:19], 0 offen\ns_mov_b32 s4, %d\ns_waitcnt vmcnt(0)\nbuffer_store_short v4, v3, s[12:15], s4 offen" % W2T)
    end(L, "tr_kernel")
    def kloop(tag, sa, va, sao, sb, vb, sbo, nk, neg=False):
        A("s_mov_b32 s50, %d\nL_%s:" % (nk, tag))
        A("buffer_load_dwordx4 v[8:11], v%d, s[%d:%d], s%d offen" % (va, sa, sa+3, sao))
        A("buffer_load_dwordx4 v[12:15], v%d, s[%d:%d], s%d offen" % (vb, sb, sb+3, sbo))
        A("s_add_u32 s%d, s%d, 32\ns_add_u32 s%d, s%d, 32\ns_waitcnt vmcnt(0)" % (sao, sao, sbo, sbo))
        A("v_mfma_f32_32x32x16_bf16 v[32:47], v[8:11], v[12:15], v[32:47]")
        A("s_sub_u32 s50, s50, 1\ns_cmp_lg_u32 s50, 0\ns_cbranch_scc1 L_%s\ns_nop 15" % tag)
    start(L, "g1_kernel", 64*88)
    srd(L, 12, 112, 256<<20); srd(L, 16, 24, 512*1024); srd(L, 20, 32, 512*1024)
    A("s_mov_b32 s4, %d\ns_mul_hi_u32 s5, s2, s4\ns_mul_i32 s6, s5, 88\ns_sub_u32 s6, s2, s6" % ((2**32+87)//88))
    A("v_and_b32 v1, 31, v0\nv_lshrrev_b32 v2, 5, v0\nv_lshlrev_b32 v3, 10, v1\nv_lshl_add_u32 v3, v2, 4, v3")
    for i in range(16): A("v_mov_b32 v%d, 0" % (32+i))
    A("s_lshl_b32 s30, s5, 15\ns_add_u32 s30, s30, %d" % XN)
    A("s_cmp_ge_u32 s6, 56\ns_cbranch_scc1 L_g1u")
    A("s_lshl_b32 s31, s6, 15\ns_add_u32 s31, s31, %d" % W1T)
    kloop("g1a", 12, 3, 30, 12, 3, 31, 32)
    A("v_mul_u32_u24 v4, %d, v2\nv_lshl_add_u32 v4, v1, 1, v4" % (4*2816*2))
    A("s_mul_i32 s32, s5, %d\ns_lshl_b32 s33, s6, 6\ns_add_u32 s32, s32, s33\ns_add_u32 s32, s32, %d" % (32*2816*2, H))
    for i in range(16):
        r = 32+i
        if mimic: rbf(L, r)
        A("v_mul_f32 v5, 0xbfb8aa3b, v%d\nv_exp_f32 v5, v5\ns_nop 0\nv_add_f32 v5, 1.0, v5\nv_rcp_f32 v5, v5\ns_nop 0\nv_mul_f32 v5, v5, v%d\nv_cvt_pk_bf16_f32 v5, v5, v5" % (r, r))
        A("s_add_u32 s33, s32, %d\nbuffer_store_short v5, v4, s[12:15], s33 offen" % ((8*(i//4)+i%4)*2816*2))
    A("s_endpgm\nL_g1u:")
    A("s_sub_u32 s6, s6, 56\ns_and_b32 s31, s6, 15\ns_lshl_b32 s31, s31, 15\ns_cmp_ge_u32 s6, 16\ns_cbranch_scc1 L_g1i")
    kloop("g1b", 12, 3, 30, 16, 3, 31, 32)
    A("s_branch L_g1s\nL_g1i:")
    kloop("g1c", 12, 3, 30, 20, 3, 31, 32)
    A("L_g1s:")
    A("v_lshlrev_b32 v4, 14, v2\nv_lshl_add_u32 v4, v1, 2, v4")
    A("s_lshl_b32 s32, s5, 17\ns_lshl_b32 s33, s6, 7\ns_add_u32 s32, s32, s33\ns_add_u32 s32, s32, %d" % U)
    for i in range(16):
        A("s_add_u32 s33, s32, %d\nbuffer_store_dword v%d, v4, s[12:15], s33 offen" % ((8*(i//4)+i%4)*4096, 32+i))
    end(L, "g1_kernel")
    start(L, "scan_kernel", 8)
    srd(L, 12, 112, 256<<20); srd(L, 16, 8, 1024); srd(L, 20, 16, 1024); srd(L, 24, 56, 1024)
    A("s_lshl_b32 s3, s2, 6\nv_add_u32 v1, s3, v0\nv_lshlrev_b32 v2, 1, v1\nv_lshlrev_b32 v3, 2, v1")
    A("buffer_load_ushort v4, v2, s[16:19], 0 offen\nbuffer_load_ushort v5, v2, s[20:23], 0 offen\nbuffer_load_ushort v6, v2, s[24:27], 0 offen\ns_waitcnt vmcnt(0)")
    A("v_lshlrev_b32 v4, 16, v4\nv_lshlrev_b32 v5, 16, v5\nv_lshlrev_b32 v6, 16, v6")
    A("v_mul_f32 v6, 0x3fb8aa3b, v6\nv_exp_f32 v6, v6\ns_nop 0"); rbf(L, 6)
    A("v_mul_f32 v7, v6, v4\nv_mul_f32 v7, 0x3fb8aa3b, v7\nv_exp_f32 v7, v7")
    A("v_mul_f32 v8, v6, v5\nv_mul_f32 v8, 0.15915494, v8\nv_fract_f32 v8, v8\nv_cos_f32 v9, v8\nv_sin_f32 v10, v8\ns_nop 0")
    A("v_mul_f32 v9, v9, v7\nv_mul_f32 v10, v10, v7")
    A("v_add_f32 v11, -1.0, v9\nv_mul_f32 v12, v4, v4\nv_fmac_f32 v12, v5, v5\nv_rcp_f32 v12, v12")
    A("v_mul_f32 v13, v11, v4\nv_fmac_f32 v13, v10, v5\nv_mul_f32 v14, v10, v4\nv_fma_f32 v14, -v11, v5, v14\nv_mul_f32 v13, v13, v12\nv_mul_f32 v14, v14, v12")
    A("v_add_f32 v13, v13, v13\nv_add_f32 v14, v14, v14")
    A("v_mov_b32 v16, 0\nv_mov_b32 v17, 0\ns_mov_b32 s30, %d\ns_mov_b32 s31, %d\ns_mov_b32 s50, 256\nL_sc:" % (U, H + 1792*2))
    for j in range(8):
        A("s_add_u32 s33, s30, %d\nbuffer_load_dword v%d, v3, s[12:15], s33 offen\nbuffer_load_dword v%d, v3, s[12:15], s33 offen offset:2048" % (j*4096, 32+2*j, 33+2*j))
    A("s_waitcnt vmcnt(0)")
    for j in range(8):
        A("v_fma_f32 v18, v9, v16, v%d\nv_fma_f32 v19, v9, v17, v%d\nv_fma_f32 v18, -v10, v17, v18\nv_fma_f32 v17, v10, v16, v19\nv_mov_b32 v16, v18" % (32+2*j, 33+2*j))
        A("v_mul_f32 v20, v13, v16\nv_fma_f32 v20, -v14, v17, v20\nv_mul_f32 v21, v13, v17\nv_fma_f32 v21, v14, v16, v21\nv_sub_f32 v21, 0, v21")
        A("v_cvt_pk_bf16_f32 v20, v20, v20\nv_cvt_pk_bf16_f32 v21, v21, v21")
        A("s_add_u32 s33, s31, %d\nbuffer_store_short v20, v2, s[12:15], s33 offen\nbuffer_store_short v21, v2, s[12:15], s33 offen offset:1024" % (j*2816*2))
    A("s_add_u32 s30, s30, %d\ns_add_u32 s31, s31, %d\ns_sub_u32 s50, s50, 1\ns_cmp_lg_u32 s50, 0\ns_cbranch_scc1 L_sc" % (8*4096, 8*2816*2))
    end(L, "scan_kernel")
    start(L, "g2_kernel", 64*16)
    srd(L, 12, 112, 256<<20); srd(L, 16, 40, 512*1024); srd(L, 20, 48, 512*1024); srd(L, 24, 96, 2048*512*4); srd(L, 36, 0, 2048*1024); srd(L, 44, 64, 1024)
    A("s_lshr_b32 s5, s2, 4\ns_and_b32 s6, s2, 15")
    A("v_and_b32 v1, 31, v0\nv_lshrrev_b32 v2, 5, v0\nv_lshlrev_b32 v3, 10, v1\nv_lshl_add_u32 v3, v2, 4, v3")
    A("v_mul_u32_u24 v4, %d, v1\nv_lshl_add_u32 v4, v2, 4, v4\nv_mul_u32_u24 v5, %d, v1\nv_lshl_add_u32 v5, v2, 4, v5" % (2816*2, 1792*2))
    for i in range(16): A("v_mov_b32 v%d, 0" % (32+i))
    A("s_mul_i32 s30, s5, %d\ns_add_u32 s30, s30, %d\ns_mul_i32 s31, s6, %d\ns_add_u32 s31, s31, %d" % (32*2816*2, H, 32*1792*2, W2T))
    kloop("g2a", 12, 4, 30, 12, 5, 31, 112)
    if mimic:
        for i in range(16): rbf(L, 32+i)
        A("s_nop 1")
    A("s_lshl_b32 s31, s6, 15")
    kloop("g2b", 12, 4, 30, 16, 3, 31, 32)
    A("s_lshl_b32 s31, s6, 15")
    kloop("g2c", 12, 4, 30, 20, 3, 31, 32)
    A("v_lshlrev_b32 v6, 1, v1\ns_lshl_b32 s33, s6, 6\nbuffer_load_ushort v7, v6, s[44:47], s33 offen")
    A("v_lshl_add_u32 v6, v2, 12, v6\nv_lshlrev_b32 v16, 1, v6")
    A("s_lshl_b32 s32, s5, 15\ns_add_u32 s32, s32, s33\ns_waitcnt vmcnt(0)\nv_lshlrev_b32 v7, 16, v7")
    for i in range(16):
        o = (8*(i//4)+i%4)*1024
        A("s_add_u32 s33, s32, %d\nbuffer_load_ushort v8, v6, s[36:39], s33 offen\ns_add_u32 s34, s33, %d\nbuffer_load_ushort v9, v6, s[12:15], s34 offen\ns_waitcnt vmcnt(0)" % (o, XN))
        A("v_lshlrev_b32 v8, 16, v8\nv_lshlrev_b32 v9, 16, v9\nv_mul_f32 v9, v9, v7")
        if mimic: rbf(L, 9)
        A("v_add_f32 v8, v8, v9\nv_add_f32 v8, v8, v%d" % (32+i))
        if perturb: A(perturb)
        A("s_lshl_b32 s34, s33, 1\nbuffer_store_dword v8, v16, s[24:27], s34 offen")
    end(L, "g2_kernel")
    if extra_kernels:
        start(L, "nop_kernel", 256); end(L, "nop_kernel")
    A('.section .rodata,"a"')
    for n in dict.fromkeys(k[0] for k in ks): A(".p2align 6\n" + kd(n, 64))
    return "\n".join(L) + "\n"
if __name__ == "__main__":
    open("base0.s", "w").write(gen(True))
    open("base1.s", "w").write(gen(False))
    import struct
    f = lambda x: "0x%08x" % struct.unpack("<I", struct.pack("<f", x))[0]
    for nm, e in (("p1", 1.01), ("p2", 1.02), ("p3", 1.04)):
        open("base_%s.s" % nm, "w").write(gen(True, "v_mul_f32 v8, %s, v8" % f(e)))
    open("base_x4.s", "w").write(gen(True, extra_kernels=4))
```
